```python
import torch

def _softmax(x, axis=-1):
    return torch.softmax(x, dim=axis)
def _gelu(x):
    return torch.nn.functional.gelu(x, approximate="tanh")
def _silu(x):
    return torch.nn.functional.silu(x)
def _sigmoid(x):
    return torch.sigmoid(x)
def _layernorm(x, axis=-1, eps=1e-5):
    m = x.mean(dim=axis, keepdim=True)
    v = x.var(dim=axis, keepdim=True, unbiased=False)
    return (x - m) / torch.sqrt(v + eps)
def _scatter_add(tgt, idx, src, axis=0):
    return tgt.clone().index_add_(axis, idx, src)
def _segment_sum(src, seg, n):
    out = torch.zeros((n,) + src.shape[1:], dtype=src.dtype)
    return out.index_add_(0, seg, src)
def _pad(x, pw):
    flat = tuple(v for pair in reversed(pw) for v in pair)
    return torch.nn.functional.pad(x, flat)

kernel_name = 'concat_heads__mha_block_cached__gqa_block_cached__near_ridge'

def setup_inputs():

    _w = (lambda a: (lambda t: t.to(torch.bfloat16) if t.is_floating_point() else t)(torch.as_tensor(a)))
    def _A_setup():
        B, Sq, D = 8, 224, 512
        H, Sk, Dh = 32, 1024, 128
        return {
            "x": _w((lambda *s: torch.randn(*s, dtype=torch.bfloat16) * 0.8)(B, Sq, D)),
            "k_cache": _w((lambda *s: torch.randn(*s, dtype=torch.bfloat16) * 0.8)(B, H, Sk, Dh)),
            "v_cache": _w((lambda *s: torch.randn(*s, dtype=torch.bfloat16) * 0.05)(B, H, Sk, Dh)),
            "wq": _w((lambda *s: torch.randn(*s, dtype=torch.bfloat16) * 0.8)(D, H * Dh) * (D ** -0.5)),
            "wo": _w((lambda *s: torch.randn(*s, dtype=torch.bfloat16) * 0.05)(H * Dh, D) * ((H * Dh) ** -0.5)),
        }
    _A_in = _A_setup()

    def _B_setup():
        B, Sq, D = 8, 224, 512
        Hq, Hkv, Sk, Dh = 32, 32, 1024, 128
        assert Hq % Hkv == 0, (Hq, Hkv)
        return {
            "x": _w((lambda *s: torch.randn(*s, dtype=torch.bfloat16) * 0.8)(B, Sq, D)),
            "k_cache": _w((lambda *s: torch.randn(*s, dtype=torch.bfloat16) * 0.8)(B, Hkv, Sk, Dh)),
            "v_cache": _w((lambda *s: torch.randn(*s, dtype=torch.bfloat16) * 0.05)(B, Hkv, Sk, Dh)),
            "wq": _w((lambda *s: torch.randn(*s, dtype=torch.bfloat16) * 0.8)(D, Hq * Dh) * (D ** -0.5)),
            "wo": _w((lambda *s: torch.randn(*s, dtype=torch.bfloat16) * 0.05)(Hq * Dh, D) * ((Hq * Dh) ** -0.5)),
        }
    _B_in = _B_setup()

    return {
        "A_x": _A_in["x"],
        "A_k_cache": _A_in["k_cache"],
        "A_v_cache": _A_in["v_cache"],
        "A_wq": _A_in["wq"],
        "A_wo": _A_in["wo"],
        "B_x": _B_in["x"],
        "B_k_cache": _B_in["k_cache"],
        "B_v_cache": _B_in["v_cache"],
        "B_wq": _B_in["wq"],
        "B_wo": _B_in["wo"],
    }

def reference(A_x, A_k_cache, A_v_cache, A_wq, A_wo, B_x, B_k_cache, B_v_cache, B_wq, B_wo):
    def _A_ref(x, k_cache, v_cache, wq, wo):
        B, Sq, D = x.shape
        H, Dh = 32, 128
        q = (lambda x, *d: x.permute(*d))((x @ wq).reshape(B, Sq, H, Dh), 0, 2, 1, 3)
        scores = torch.einsum("bhqd,bhkd->bhqk", q, k_cache) * (Dh ** -0.5)
        p = _softmax(scores, axis=-1)
        o = torch.einsum("bhqk,bhkd->bhqd", p, v_cache)
        return (lambda x, *d: x.permute(*d))(o, 0, 2, 1, 3).reshape(B, Sq, H * Dh) @ wo

    def _B_ref(x, k_cache, v_cache, wq, wo):
        B, Sq, D = x.shape
        Hq, Dh = 32, 128
        Hkv = k_cache.shape[1]
        rep = Hq // Hkv
        q = (lambda x, *d: x.permute(*d))((x @ wq).reshape(B, Sq, Hq, Dh), 0, 2, 1, 3)
        k = (lambda x, n, axis: torch.repeat_interleave(x, n, dim=axis))(k_cache, rep, axis=1)
        v = (lambda x, n, axis: torch.repeat_interleave(x, n, dim=axis))(v_cache, rep, axis=1)
        scores = torch.einsum("bhqd,bhkd->bhqk", q, k) * (Dh ** -0.5)
        p = _softmax(scores, axis=-1)
        o = torch.einsum("bhqk,bhkd->bhqd", p, v)
        return (lambda x, *d: x.permute(*d))(o, 0, 2, 1, 3).reshape(B, Sq, Hq * Dh) @ wo

    a = _A_ref(A_x, A_k_cache, A_v_cache, A_wq, A_wo)
    b = _B_ref(B_x, B_k_cache, B_v_cache, B_wq, B_wo)
    return torch.concatenate([a, b], axis=-1)
```

```python
import re
RX=re.compile(r'^v(\d+)$|^v\[(\d+):(\d+)\]$')
SX=re.compile(r'^s(\d+)$|^s\[(\d+):(\d+)\]$')
def vregs(op):
    m=RX.match(op.lstrip('-'))
    if not m: return set()
    if m.group(1) is not None: return {int(m.group(1))}
    return set(range(int(m.group(2)),int(m.group(3))+1))
def sregs(op):
    if op=='vcc': return {'vcc'}
    if op=='m0': return {'m0'}
    m=SX.match(op)
    if not m: return set()
    if m.group(1) is not None: return {int(m.group(1))}
    return set(range(int(m.group(2)),int(m.group(3))+1))
TRANS=('v_exp_f32','v_rcp_f32','v_log_f32','v_rsq_f32')
class E:
    def __init__(s):
        s.out=[]; s.hist=[]; s.nops=0; s.noplog={}; s.tag=''
    def raw(s,t): s.out.append(t)
    def label(s,n): s.out.append(n+':')
    def reset(s): s.hist=[]
    def __call__(s,t):
        t=t.strip(); p=t.split(None,1); op=p[0]
        ops=[o.strip() for o in re.split(r',',p[1])] if len(p)>1 else []
        if ops: ops[-1]=ops[-1].split()[0] if not op.startswith('buffer') else ops[-1]
        d=dict(op=op,vw=set(),vr=set(),sw=set(),sr=set(),cr=set(),ws=1,kind='s')
        if op=='s_nop': d['ws']=int(ops[0])+1
        elif op.startswith('v_mfma'):
            d['kind']='mfma'; d['vw']=vregs(ops[0]); d['vr']=vregs(ops[1])|vregs(ops[2]); d['cr']=vregs(ops[3])
        elif op.startswith('v_cmp'):
            d['kind']='valu'; d['sw']=sregs(ops[0])
            for o in ops[1:]: d['vr']|=vregs(o); d['sr']|=sregs(o)
        elif op.startswith('v_readfirstlane'):
            d['kind']='valu'; d['sw']=sregs(ops[0]); d['vr']=vregs(ops[1])
        elif op.startswith('v_permlane'):
            d['kind']='valu'; d['vw']=vregs(ops[0])|vregs(ops[1]); d['vr']=set(d['vw'])
        elif op.startswith('v_'):
            d['kind']='valu'; d['vw']=vregs(ops[0])
            for o in ops[1:]: d['vr']|=vregs(o); d['sr']|=sregs(o)
            if op.startswith('v_fmac'): d['vr']|=d['vw']
        elif op.startswith('ds_read'):
            d['kind']='mem'; d['vw']=vregs(ops[0]); d['vr']=vregs(ops[1])
        elif op.startswith('buffer_load'):
            d['kind']='mem'
            if t.endswith('lds'):
                d['vr']=vregs(ops[0]); d['sr']=sregs(ops[1])|sregs(ops[2].split()[0])|{'m0'}
            else:
                d['vw']=vregs(ops[0]); d['vr']=vregs(ops[1]); d['sr']=sregs(ops[2])|sregs(ops[3].split()[0])
        elif op.startswith('buffer_store'):
            d['kind']='mem'; d['st']=vregs(ops[0]); d['vr']=vregs(ops[0])|vregs(ops[1]); d['sr']=sregs(ops[2])|sregs(ops[3].split()[0])
        elif op.startswith('s_') and ops and not op.startswith(('s_cmp','s_cbranch','s_branch','s_waitcnt','s_setprio','s_barrier')):
            d['sw']=sregs(ops[0])
            for o in ops[1:]: d['sr']|=sregs(o)
        need=0; dist=0; why=''
        for h in reversed(s.hist):
            req=0; k=d['kind']; touch=d['vr']|d['vw']
            if h['kind']=='mfma':
                if k in('valu','mem') and (h['vw']&touch): req=12
                if k=='mfma':
                    if h['vw']&d['vr']: req=12
                    elif (h['vw']&d['cr']) and h['vw']!=d['cr']: req=10
                    elif (h['vw']&d['vw']) and h['vw']!=d['cr']: req=max(req,10)
                if k=='valu' and (h['cr']&d['vw']): req=max(req,7)
            if h['kind']=='valu':
                if k=='mfma' and (h['vw']&(d['vr']|d['cr'])): req=2
                if h['op'] in TRANS and k=='valu' and (h['vw']&d['vr']): req=max(req,1)
                if op.startswith('v_permlane') and (h['vw']&d['vr']): req=max(req,2)
                if op.startswith('v_readfirstlane') and (h['vw']&d['vr']): req=max(req,1)
                if k=='mem' and (h['sw']&d['sr']): req=max(req,5)
                if k=='valu' and (h['sw']&d['sr']): req=max(req,2)
                if k=='s' and (h['sw']&d['sr']): req=max(req,4)
            if h['kind']=='s' and 'm0' in h['sw'] and k=='mem' and 'm0' in d['sr']: req=1
            if h.get('st') and k=='valu' and (h['st']&d['vw']): req=max(req,2)
            if req-dist>need: need=req-dist; why=h['op']
            dist+=h['ws']
            if dist>=12: break
        while need>0:
            n=min(need,16); s.out.append('s_nop %d'%(n-1)); s.hist.append(dict(op='s_nop',vw=set(),vr=set(),sw=set(),sr=set(),cr=set(),ws=n,kind='s'))
            key=(s.tag,why,op); s.noplog[key]=s.noplog.get(key,0)+n; need-=n
        s.out.append(t); s.hist.append(d)
        if len(s.hist)>40: s.hist=s.hist[-20:]
    def text(s): return '\n'.join(s.out)+'\n'
```

```python
from emit import E
ACC,SA,SB,NEGM,Q,P,F=0,64,96,128,144,176,192
KA,VA,XV,L,MX,T0,T1,LANE,T2,T3,DUM=224,232,236,238,242,243,244,245,246,247,250
def vr(a,n): return 'v[%d:%d]'%(a,a+n-1)
class Pipe:
    def __init__(s,e,R,PD): s.e=e; s.R=R; s.PD=PD; s.fifo=[]; s.issued=set()
    def areg(s,m): return F+4*(m%s.R)
    def issue(s,M,m):
        if m>=len(M) or m in s.issued: return
        s.issued.add(m)
        for p in M[m].get('pre',[]): s.e(p)
        a=s.areg(m)
        for r in M[m]['reads']:
            s.e(r.format(A4=vr(a,4),A0=vr(a,2),A1=vr(a+2,2))); s.fifo.append(m)
    def run(s,M,lo,hi):
        e=s.e
        for m in range(lo,hi):
            for k in range(m,m+s.PD): s.issue(M,k)
            idx=[i for i,t in enumerate(s.fifo) if t<=m]
            if idx:
                n=len(s.fifo)-1-idx[-1]; assert n<16
                e('s_waitcnt lgkmcnt(%d)'%n); s.fifo=s.fifo[idx[-1]+1:]
            d=M[m]
            e('v_mfma_f32_32x32x16_bf16 %s, %s, %s, %s'%(vr(d['D'],16),vr(s.areg(m),4),vr(d['B'],4),d['C']))
            g=list(d.get('gap',[])); h=(len(g)+1)//2
            for x in g[:h]: e(x)
            s.issue(M,m+s.PD)
            for x in g[h:]: e(x)
            for x in d.get('post',[]): x()
def srd(e,s,ptr,off,size):
    e('s_add_u32 s%d, s%d, s%d'%(s,ptr,off)); e('s_addc_u32 s%d, s%d, 0'%(s+1,ptr+1))
    e('s_mov_b32 s%d, %s'%(s+2,size)); e('s_mov_b32 s%d, 0x20000'%(s+3))
SK,SV,SW,SX,SO=8,12,16,20,24
def srd_kvw(e):
    e('s_lshl_b32 s28, s6, 5'); e('s_add_u32 s28, s28, s7'); e('s_lshl_b32 s28, s28, 18')
    srd(e,SK,34,28,262144); srd(e,SV,36,28,262144)
    e('s_lshl_b32 s28, s7, 8'); e('s_sub_u32 s29, 0x400000, s28'); srd(e,SW,38,28,'s29')
def srd_x(e):
    e('s_mul_i32 s28, s6, 229376'); srd(e,SX,32,28,229376)
def next_ptrs(e):
    for i in range(8): e('s_mov_b32 s%d, s%d'%(32+i,40+i))
def ld_k(e,t,dyn=False):
    for q in range(4):
        if dyn:
            e('s_add_u32 m0, s50, %d'%(q*4096)); e('s_add_u32 s52, s51, %d'%(q*4096))
        else:
            e('s_mov_b32 m0, %d'%((t%4)*16384+q*4096)); e('s_mov_b32 s52, %d'%(t*16384+q*4096))
        for p in range(4): e('buffer_load_dwordx4 v%d, s[8:11], s52 offen offset:%d lds'%(10+p,p*1024))
def ld_v(e,t,dyn=False):
    for q in range(4):
        if dyn:
            e('s_add_u32 m0, s53, %d'%(65536+q*4096)); e('s_add_u32 s52, s54, %d'%(q*4096))
        else:
            e('s_mov_b32 m0, %d'%(65536+(t%4)*16384+q*4096)); e('s_mov_b32 s52, %d'%(t*16384+q*4096))
        for p in range(4): e('buffer_load_dwordx4 v14, s[12:15], s52 offen offset:%d lds'%(p*1024))
def ld_w(e,c):
    for p in range(16):
        e('s_mov_b32 m0, %d'%(65536+(1+c%3)*16384+p*1024)); e('s_mov_b32 s52, %d'%((64*c+4*p)*8192))
        e('buffer_load_dwordx4 v15, s[16:19], s52 offen lds')
def ld_x(c):
    r=[]
    for p in range(4):
        r+=['s_add_u32 m0, s%d, %d'%(31 if c&1 else 30,p*1024),'s_add_u32 s52, s55, %d'%(p*8192+c*128),
            'buffer_load_dwordx4 v%d, s[20:23], s52 offen lds'%(XV+(p&1))]
    return r
def loader(e):
    e.label('LOADER'); e.tag='ld'
    e('v_lshrrev_b32 v1, 4, v245'); e('v_and_b32 v2, 15, v245')
    for p in range(4):
        e('v_add_u32 v3, %d, v1'%(4*p)); e('v_xor_b32 v3, v3, v2'); e('v_lshlrev_b32 v3, 4, v3'); e('v_lshl_add_u32 v%d, v1, 8, v3'%(10+p))
    e('v_lshlrev_b32 v3, 2, v1'); e('v_xor_b32 v3, v3, v2'); e('v_lshlrev_b32 v3, 4, v3')
    e('v_lshl_add_u32 v14, v1, 8, v3'); e('v_lshl_add_u32 v15, v1, 13, v3')
    srd_kvw(e)
    ld_w(e,0); ld_w(e,1); ld_k(e,0); ld_k(e,1)
    e.label('LD_ROUND')
    fifo=['W0']*16+['W1']*16+['K0']*16+['K1']*16
    def wait(names):
        nonlocal fifo
        idx=[i for i,t in enumerate(fifo) if t in names]
        n=len(fifo)-1-idx[-1] if idx else len(fifo)
        e('s_waitcnt vmcnt(%d)'%min(n,63))
        if idx: fifo=fifo[idx[-1]+1:]
    for c in range(8):
        wait(['W%d'%c]); e('s_barrier')
        if c==0: ld_w(e,2); ld_v(e,0); fifo+=['W2']*16+['V0']*16
        elif c<=5: ld_w(e,c+2); fifo+=['W%d'%(c+2)]*16
        elif c==7: ld_k(e,2); ld_v(e,1); fifo+=['K2']*16+['V1']*16
    wait(['K0','K1','V0']); e('s_barrier')
    e('s_mov_b32 s56, 0')
    e.label('LD_LOOP')
    e('s_add_u32 s51, s56, 3'); e('s_and_b32 s50, s51, 3'); e('s_lshl_b32 s50, s50, 14'); e('s_lshl_b32 s51, s51, 14')
    e('s_add_u32 s54, s56, 2'); e('s_and_b32 s53, s54, 3'); e('s_lshl_b32 s53, s53, 14'); e('s_lshl_b32 s54, s54, 14')
    ld_k(e,0,True); ld_v(e,0,True)
    e('s_waitcnt vmcnt(32)'); e('s_barrier')
    e('s_add_u32 s56, s56, 1'); e('s_cmp_lt_u32 s56, 13'); e('s_cbranch_scc1 LD_LOOP')
    ld_v(e,15); e('s_waitcnt vmcnt(16)'); e('s_barrier')
    e('s_waitcnt vmcnt(0)'); e('s_barrier')
    e('s_cmp_lg_u32 s4, 0'); e('s_cbranch_scc1 LD_END')
    e('s_mov_b32 s4, 1'); next_ptrs(e); srd_kvw(e)
    ld_w(e,0); ld_w(e,1); ld_k(e,0); ld_k(e,1)
    e('s_branch LD_ROUND')
    e.label('LD_END'); e('s_endpgm')
def body_gaps(i,last):
    cur=SA if i%2==0 else SB; nxt=SB if i%2==0 else SA
    g=[[] for _ in range(32)]
    span=26 if not last else 10
    off=0
    E_=[off+(v*span)//32 for v in range(32)]
    for v in range(32):
        g[E_[v]].append((0,v,'v_exp_f32 v%d, v%d'%(cur+v,cur+v)))
        g[E_[v]+1].append((1,v,'v_add_f32 v%d, v%d, v%d'%(L+(v&3),L+(v&3),cur+v)))
        if v&1: g[E_[v]+1].append((2,v,'v_cvt_pk_bf16_f32 v%d, v%d, v%d'%(P+v//2,cur+v-1,cur+v)))
    if not last:
        ops=['v_max3_f32 v%d, v%d, v%d, v%d'%(MX,nxt,nxt+1,nxt+2)]
        k=3
        while k<32:
            ops.append('v_max3_f32 v%d, v%d, v%d, v%d'%(MX,MX,nxt+k,nxt+min(k+1,31))); k+=2
        for j,o in enumerate(ops):
            gp=11+j if j<7 else 19+(j-7)
            g[gp].append((3,j,o))
        g[28].append((4,0,'v_mov_b32 v%d, v%d'%(T0,MX)))
        g[29].append((4,1,'v_permlane32_swap_b32 v%d, v%d'%(MX,T0)))
        g[30].append((4,2,'v_max_f32 v%d, v%d, v%d'%(MX,MX,T0)))
        g[30].append((4,3,'v_cmp_lt_f32 vcc, s57, v%d'%MX))
    out=[]
    for x in g:
        ex=[t[2] for t in x if t[0]==0]; ot=[t[2] for t in sorted(x) if t[0]!=0]
        seq=[]
        while ex or ot:
            if ex: seq.append(ex.pop(0))
            if ot: seq.append(ot.pop(0))
        out.append(seq)
    return out
def kernel1(R=4,PD=3):
    e=E(); e.tag='pro'
    e('s_cmp_ge_u32 s2, 256'); e('s_cbranch_scc1 K1_EXIT')
    e('s_load_dwordx8 s[32:39], s[0:1], 0'); e('s_load_dwordx8 s[40:47], s[0:1], 40'); e('s_load_dwordx2 s[48:49], s[0:1], 96')
    e('v_and_b32 v245, 63, v0'); e('v_lshrrev_b32 v1, 6, v0'); e('v_readfirstlane_b32 s5, v1')
    e('s_and_b32 s28, s2, 7'); e('s_lshr_b32 s29, s2, 3')
    e('s_and_b32 s6, s28, 1'); e('s_lshl_b32 s6, s6, 2'); e('s_and_b32 s7, s29, 3'); e('s_add_u32 s6, s6, s7')
    e('s_lshr_b32 s7, s28, 1'); e('s_lshl_b32 s7, s7, 3'); e('s_lshr_b32 s29, s29, 2'); e('s_add_u32 s7, s7, s29')
    e('s_mov_b32 s4, 0'); e('s_mov_b32 s57, 0x41000000'); e('s_mov_b32 s58, 4096'); e('s_mov_b32 s59, 0x3e0293ee')
    e('s_waitcnt lgkmcnt(0)')
    e('s_cmp_eq_u32 s5, 7'); e('s_cbranch_scc1 LOADER')
    e('s_lshl_b32 s30, s5, 12'); e('s_add_u32 s31, s30, 131072'); e('s_add_u32 s30, s30, 32768'); e('s_lshl_b32 s55, s5, 15')
    e('v_lshrrev_b32 v1, 4, v245'); e('v_and_b32 v2, 7, v245'); e('v_lshrrev_b32 v4, 3, v245')
    for p in range(2):
        e('v_add_u32 v3, %d, v1'%(4*p)); e('v_xor_b32 v3, v3, v2'); e('v_lshlrev_b32 v3, 4, v3'); e('v_lshl_add_u32 v%d, v4, 10, v3'%(XV+p))
    srd_x(e)
    for x in ld_x(0)+ld_x(1): e(x)
    e('v_and_b32 v1, 31, v245'); e('v_lshrrev_b32 v2, 5, v245'); e('v_and_b32 v3, 15, v245'); e('v_xor_b32 v3, v3, v2')
    e('v_lshlrev_b32 v3, 4, v3'); e('v_lshl_add_u32 v3, v1, 8, v3')
    for s in range(8): e('v_xor_b32 v%d, %d, v3'%(KA+s,32*s))
    def tr_addr(dst,hishift,swap):
        e('v_bfe_u32 v3, v245, 2, 2'); e('v_and_b32 v4, 3, v245'); e('v_bfe_u32 v5, v245, 4, 1'); e('v_lshrrev_b32 v2, 5, v245')
        if swap:
            e('v_lshlrev_b32 v6, 1, v4'); e('v_and_b32 v6, 2, v6'); e('v_lshrrev_b32 v4, 1, v4'); e('v_or_b32 v4, v4, v6')
        e('v_lshl_add_u32 v6, v2, %d, v3'%hishift); e('v_lshlrev_b32 v6, 8, v6')
        e('v_lshl_add_u32 v6, v5, 5, v6'); e('v_lshl_add_u32 v6, v4, 3, v6'); e('v_add_u32 v6, 65536, v6')
        for dt in range(4):
            e('v_xor_b32 v7, %d, v3'%dt); e('v_lshl_add_u32 v%d, v7, 6, v6'%(dst+dt))
    tr_addr(VA,2,False)
    e.label('ROUND'); e.tag='q'
    WA,XRE,XRO=SB,SB+4,SB+8
    tr_addr(WA,3,True)
    e('v_and_b32 v1, 31, v245'); e('v_lshrrev_b32 v2, 5, v245'); e('v_bfe_u32 v3, v245, 1, 3')
    for ks in range(4):
        e('v_add_u32 v4, %d, v2'%(2*ks)); e('v_xor_b32 v4, v4, v3'); e('v_lshlrev_b32 v4, 4, v4'); e('v_lshl_add_u32 v4, v1, 7, v4')
        e('v_add_u32 v%d, s30, v4'%(XRE+ks)); e('v_add_u32 v%d, s31, v4'%(XRO+ks))
    M=[]
    for c in range(8):
        for ks in range(4):
            for dt in range(4):
                sl=(1+c%3)*16384
                d=dict(D=ACC+16*dt,C='0' if c==0 and ks==0 else vr(ACC+16*dt,16),B=SA+16*(c&1)+4*ks,
                  reads=['ds_read_b64_tr_b16 {A%d}, v%d offset:%d'%(u,WA+dt,sl+(16*ks+4*u)*256) for u in range(2)])
                if ks==0 and dt==0:
                    d['pre']=['s_waitcnt vmcnt(%d)'%(4 if c<7 else 0),'s_barrier']
                    d['reads']=['ds_read_b128 %s, v%d'%(vr(SA+16*(c&1)+4*k,4),(XRO if c&1 else XRE)+k) for k in range(4)]+d['reads']
                    if c+2<8: d['gap']=ld_x(c+2)
                M.append(d)
    pp=Pipe(e,R,PD); pp.run(M,0,128)
    e.tag='qe'
    for s in range(8):
        for n in range(4):
            a=ACC+8*s+2*n
            e('v_mul_f32 v%d, s59, v%d'%(a,a)); e('v_mul_f32 v%d, s59, v%d'%(a+1,a+1))
        for n in range(4):
            a=ACC+8*s+2*n
            e('v_cvt_pk_bf16_f32 v%d, v%d, v%d'%(Q+4*s+n,a,a+1))
    def qk(t,first):
        S=SA if t%2==0 else SB; r=[]
        for kt in range(2):
            for s in range(8):
                r.append(dict(D=S+16*kt,C=(('0' if first else vr(NEGM,16)) if s==0 else vr(S+16*kt,16)),B=Q+4*s,
                  reads=['ds_read_b128 {A4}, v%d offset:%d'%(KA+s,(t%4)*16384+kt*8192)]))
        return r
    def pv(t):
        r=[]
        for ks in range(4):
            for dt in range(4):
                r.append(dict(D=ACC+16*dt,C=vr(ACC+16*dt,16),B=P+4*ks,
                  reads=['ds_read_b64_tr_b16 {A%d}, v%d offset:%d'%(u,VA+dt,(t%4)*16384+(16*ks+8*u)*256) for u in range(2)]))
        return r
    M=qk(0,True); M[0]['pre']=['s_barrier']
    z=['v_mov_b32 v%d, 0'%r for r in list(range(ACC,ACC+64))+list(range(L,L+4))]
    for m in range(16): M[m]['gap']=z[m*5:(m+1)*5]
    start=[16]
    for i in range(16):
        b=(qk(i+1,False) if i<15 else [])+pv(i)
        gp=body_gaps(i,i==15)
        if i==15:
            for m in range(16): b[m]['gap']=[]
        else:
            for m in range(32): b[m]['gap']=gp[m]
        M+=b; start.append(len(M))
    for i in range(1,16):
        M[start[i]]['pre']=(['s_waitcnt lgkmcnt(0)'] if i==15 else [])+['s_barrier']
    pp=Pipe(e,R,PD); e.tag='pro2'
    pp.run(M,0,16)
    S=SA
    e('v_max3_f32 v%d, v%d, v%d, v%d'%(MX,S,S+1,S+2))
    for k in range(3,32,2): e('v_max3_f32 v%d, v%d, v%d, v%d'%(MX,MX,S+k,S+min(k+1,31)))
    e('v_mov_b32 v%d, v%d'%(T0,MX)); e('v_permlane32_swap_b32 v%d, v%d'%(MX,T0)); e('v_max_f32 v%d, v%d, v%d'%(MX,MX,T0))
    for k in range(32): e('v_sub_f32 v%d, v%d, v%d'%(S+k,S+k,MX))
    for k in range(16): e('v_sub_f32 v%d, 0, v%d'%(NEGM+k,MX))
    resc=[]
    def emit_body(i):
        e.tag='b%d'%i
        if i==15:
            e('s_cmp_lg_u32 s4, 0'); e('s_cbranch_scc1 NOX');
            next_ptrs(e); srd_x(e)
            for x in ld_x(0)+ld_x(1): e(x)
            e.label('NOX'); e.reset()
            gp=body_gaps(15,True)
            for g in gp:
                for x in g: e(x)
        pp.run(M,start[i],start[i+1])
        if i<15:
            e('s_cbranch_vccnz RESC%d'%i); e.label('BACK%d'%i); resc.append(i)
    e('s_mov_b32 s56, 0'); e.label('LOOP')
    for i in range(4): emit_body(i)
    e('s_add_u32 s56, s56, 1'); e('s_cmp_lt_u32 s56, 3'); e('s_cbranch_scc1 LOOP')
    sh=start[12]-start[4]
    pp.fifo=[t+sh for t in pp.fifo]; pp.issued={t+sh for t in pp.issued}
    for i in range(12,16): emit_body(i)
    e.tag='ep'
    e('v_add_f32 v%d, v%d, v%d'%(L,L,L+1)); e('v_add_f32 v%d, v%d, v%d'%(L+2,L+2,L+3)); e('v_add_f32 v%d, v%d, v%d'%(L,L,L+2))
    e('v_mov_b32 v%d, v%d'%(T0,L)); e('v_permlane32_swap_b32 v%d, v%d'%(L,T0)); e('v_add_f32 v%d, v%d, v%d'%(L,L,T0)); e('v_rcp_f32 v%d, v%d'%(L,L))
    e('s_lshl_b32 s28, s4, 3'); e('s_add_u32 s28, s28, s6'); e('s_lshl_b32 s28, s28, 5'); e('s_add_u32 s28, s28, s7'); e('s_mul_i32 s28, s28, 57344')
    srd(e,SO,48,28,57344)
    e('s_lshl_b32 s28, s5, 13'); e('v_lshlrev_b32 v%d, 4, v245'%T1); e('v_add_u32 v%d, s28, v%d'%(T1,T1))
    for s in range(8):
        for n in range(8): e('v_mul_f32 v%d, v%d, v%d'%(ACC+8*s+n,ACC+8*s+n,L))
        for n in range(4): e('v_cvt_pk_bf16_f32 v%d, v%d, v%d'%(Q+4*s+n,ACC+8*s+2*n,ACC+8*s+2*n+1))
        e('buffer_store_dwordx4 %s, v%d, s[24:27], %s offen offset:%d'%(vr(Q+4*s,4),T1,'s58' if s>=4 else '0',(s&3)*1024))
    e('s_cmp_lg_u32 s4, 0'); e('s_cbranch_scc1 K1_DONE'); e('s_mov_b32 s4, 1')
    e('s_branch ROUND')
    e.label('K1_DONE'); e('s_waitcnt vmcnt(0)'); e.label('K1_EXIT'); e('s_endpgm')
    for i in resc:
        e.reset(); e.tag='rs'; nxt=SB if i%2==0 else SA
        e.label('RESC%d'%i); e('s_nop 15')
        e('v_max_f32 v%d, 0, v%d'%(MX,MX)); e('v_sub_f32 v%d, 0, v%d'%(T0,MX)); e('v_exp_f32 v%d, v%d'%(T0,T0))
        for k in range(32): e('v_sub_f32 v%d, v%d, v%d'%(nxt+k,nxt+k,MX))
        for k in range(16): e('v_sub_f32 v%d, v%d, v%d'%(NEGM+k,NEGM+k,MX))
        for k in list(range(ACC,ACC+64))+list(range(L,L+4)): e('v_mul_f32 v%d, v%d, v%d'%(k,k,T0))
        e('s_nop 1'); e('s_branch BACK%d'%i)
    e.reset(); loader(e)
    return e
```

```python
from emit import E
from k1 import vr,srd
def kernel2(NB=3,R=8,PD=6):
    e=E(); e.tag='k2'
    ACC,F,BB=0,32,64
    AD,T1,LANE,WV=BB+32*NB,BB+32*NB+2,BB+32*NB+3,BB+32*NB+4
    BV=WV+1
    e('s_cmp_ge_u32 s2, 224'); e('s_cbranch_scc1 K2_EXIT')
    e('s_load_dwordx2 s[32:33], s[0:1], 32'); e('s_load_dwordx2 s[34:35], s[0:1], 72'); e('s_load_dwordx2 s[36:37], s[0:1], 80'); e('s_load_dwordx2 s[48:49], s[0:1], 96')
    e('v_and_b32 v%d, 63, v0'%LANE); e('v_lshrrev_b32 v1, 6, v0'); e('v_readfirstlane_b32 s5, v1')
    e('s_and_b32 s28, s2, 7'); e('s_lshr_b32 s29, s2, 3'); e('s_mul_i32 s28, s28, 28'); e('s_add_u32 s28, s28, s29')
    e('s_and_b32 s7, s28, 7'); e('s_lshr_b32 s28, s28, 3')
    e('s_cmp_ge_u32 s28, 14'); e('s_cselect_b32 s4, 1, 0'); e('s_mul_i32 s29, s4, 14'); e('s_sub_u32 s6, s28, s29')
    e('s_lshl_b32 s6, s6, 2'); e('s_add_u32 s6, s6, s5')
    e('s_mul_i32 s28, s6, 37'); e('s_lshr_b32 s28, s28, 8')
    e('s_mul_i32 s29, s28, 7'); e('s_sub_u32 s29, s6, s29')
    e('s_lshl_b32 s30, s4, 3'); e('s_add_u32 s30, s30, s28'); e('s_mul_i32 s30, s30, %d'%(32*57344)); e('s_lshl_b32 s29, s29, 13'); e('s_add_u32 s30, s30, s29')
    e('s_waitcnt lgkmcnt(0)')
    srd(e,8,48,30,32*57344)
    e('s_cmp_eq_u32 s4, 0'); e('s_cselect_b32 s32, s32, s34'); e('s_cselect_b32 s33, s33, s35')
    e('s_lshl_b32 s28, s7, 7'); e('s_sub_u32 s29, 0x400000, s28'); srd(e,12,32,28,'s29')
    e('s_lshl_b32 s28, s6, 16'); e('s_lshl_b32 s29, s4, 10'); e('s_add_u32 s28, s28, s29'); e('s_lshl_b32 s29, s7, 7'); e('s_add_u32 s28, s28, s29')
    srd(e,16,36,28,65536)
    e('s_lshl_b32 s29, s4, 10'); e('s_lshl_b32 s31, s7, 7'); e('s_add_u32 s29, s29, s31'); e('s_sub_u32 s18, 65536, s29')
    L=LANE
    e('v_lshlrev_b32 v%d, 4, v%d'%(BV,L))
    e('v_lshrrev_b32 v1, 3, v%d'%L); e('v_bfe_u32 v2, v%d, 4, 1'%L); e('v_lshlrev_b32 v2, 2, v2'); e('v_and_b32 v3, 7, v%d'%L)
    e('v_xor_b32 v2, v2, v3'); e('v_lshlrev_b32 v2, 4, v2'); e('v_lshl_add_u32 v%d, v1, 10, v2'%WV)
    e('v_bfe_u32 v3, v%d, 2, 2'%L); e('v_and_b32 v4, 3, v%d'%L); e('v_bfe_u32 v5, v%d, 4, 1'%L); e('v_lshrrev_b32 v2, 5, v%d'%L)
    e('v_lshl_add_u32 v6, v2, 2, v3'); e('v_lshlrev_b32 v6, 7, v6')
    e('v_and_b32 v7, 1, v4'); e('v_lshl_add_u32 v6, v7, 5, v6'); e('v_lshl_add_u32 v6, v5, 4, v6'); e('v_lshrrev_b32 v7, 1, v4'); e('v_lshl_add_u32 v6, v7, 3, v6')
    e('v_lshrrev_b32 v3, 1, v3')
    for n in range(2):
        e('v_xor_b32 v7, %d, v3'%n); e('v_lshl_add_u32 v%d, v7, 6, v6'%(AD+n))
    e('v_and_b32 v1, 31, v%d'%L); e('v_lshrrev_b32 v2, 5, v%d'%L); e('v_lshlrev_b32 v1, 11, v1'); e('v_lshl_add_u32 v%d, v2, 5, v1'%T1)
    e('s_lshl_b32 s30, s5, 12')
    e('s_lshl_b32 s31, s5, 15')
    e('s_mov_b32 s58, 4096')
    def loads(buf,slot):
        r=[]
        for p in range(4):
            r+=['s_add_u32 m0, s30, %d'%(slot*16384+p*1024),'s_add_u32 s52, s51, %d'%(p*8192),'buffer_load_dwordx4 v%d, s[12:15], s52 offen lds'%WV]
        r+=['s_add_u32 s53, s50, 4096']
        for s in range(8):
            r+=['buffer_load_dwordx4 %s, v%d, s[8:11], %s offen offset:%d'%(vr(BB+32*buf+4*s,4),BV,'s53' if s>=4 else 's50',(s&3)*1024)]
        r+=['s_add_u32 s50, s50, 57344','s_add_u32 s51, s51, 131072']
        return r
    e('s_mov_b32 s50, 0'); e('s_mov_b32 s51, s31')
    for h in range(NB-1):
        for x in loads(h,h): e(x)
    for r in range(32): e('v_mov_b32 v%d, 0'%(ACC+r))
    U=12 if NB==3 else 4
    class PP:
        pass
    fifo=[]; issued=set()
    M=[]
    NCH=32
    for h in range(NCH):
        for s in range(8):
            for n in range(2):
                d=dict(D=ACC+16*n,B=BB+32*(h%NB)+4*s,reads=['ds_read_b64_tr_b16 {A%d}, v%d offset:%d'%(u,AD+n,(h%4)*16384+(16*s+8*u)*128) for u in range(2)])
                if s==0 and n==0:
                    later=min(NB-2,NCH-1-h)
                    d['pre']=['s_waitcnt vmcnt(%d)'%(12*later),'s_barrier']
                M.append(d)
    def issue(m):
        if m>=len(M) or m in issued: return
        issued.add(m)
        for p in M[m].get('pre',[]): e(p)
        a=F+4*(m%R)
        for r in M[m]['reads']: e(r.format(A0=vr(a,2),A1=vr(a+2,2))); fifo.append(m)
    for m in range(len(M)):
        h=m//16
        for k in range(m,m+PD): issue(k)
        idx=[i for i,t in enumerate(fifo) if t<=m]
        if idx:
            e('s_waitcnt lgkmcnt(%d)'%min(15,len(fifo)-1-idx[-1])); del fifo[:idx[-1]+1]
        d=M[m]
        e('v_mfma_f32_32x32x16_bf16 %s, %s, %s, %s'%(vr(d['D'],16),vr(F+4*(m%R),4),vr(d['B'],4),vr(d['D'],16)))
        if m%16==0 and h+NB-1<NCH:
            ld=loads((h+NB-1)%NB,(h+NB-1)%4)
            M[m]['g']=ld
        base=h*16; ld=M[base].get('g',[]); k=m-base
        for x in ld[k*3:(k+1)*3]: e(x)
        issue(m+PD)
    for n in range(2):
        for j in range(8): e('v_cvt_pk_bf16_f32 v%d, v%d, v%d'%(F+8*n+j,ACC+16*n+2*j,ACC+16*n+2*j+1))
        for j in range(2): e('buffer_store_dwordx4 %s, v%d, s[16:19], 0 offen offset:%d'%(vr(F+8*n+4*j,4),T1,n*64+j*16))
    e('s_waitcnt vmcnt(0)'); e.label('K2_EXIT'); e('s_endpgm')
    return e,BV+1
```

```python
import sys
from k1 import kernel1
from k2 import kernel2
NAME='concat_heads__mha_block_cached__gqa_block_cached__near_ridge'
def build(path,**kw):
    e1=kernel1(**kw.get('k1',{})); e2,nv2=kernel2(**kw.get('k2',{}))
    hdr=open('cdna_kernels/%s.s.ref'%NAME).read().split('; Override')[0]
    t=hdr+'; @launch kernel=attn_kernel grid=(256,1,1) block=(512,1,1) lds=163840\n; @launch kernel=oproj_kernel grid=(224,1,1) block=(256,1,1) lds=65536\n'
    t+='.amdgcn_target "amdgcn-amd-amdhsa--gfx950"\n.text\n'
    for n,e in (('attn_kernel',e1),('oproj_kernel',e2)):
        t+='.globl %s\n.p2align 8\n.type %s,@function\n%s:\n'%(n,n,n)+e.text()
    t+='.section .rodata,"a"\n'
    for n,nv in (('attn_kernel',256),('oproj_kernel',(nv2+7)//8*8)):
        t+='.p2align 6\n.amdhsa_kernel %s\n  .amdhsa_next_free_vgpr %d\n  .amdhsa_next_free_sgpr 102\n  .amdhsa_accum_offset %d\n  .amdhsa_group_segment_fixed_size 0\n  .amdhsa_kernarg_size 104\n  .amdhsa_user_sgpr_count 2\n  .amdhsa_user_sgpr_kernarg_segment_ptr 1\n  .amdhsa_system_sgpr_workgroup_id_x 1\n.end_amdhsa_kernel\n'%(n,nv,nv)
    open(path,'w').write(t)
    for nm,e in (('k1',e1),('k2',e2)):
        if e.noplog: print(nm,'nops:',e.noplog)
    print(path,len(t),'bytes')
if __name__=='__main__':
    build('cdna_kernels/%s.s'%NAME)
```
